```python
import torch

def _softmax(x, axis=-1):
    return torch.softmax(x, dim=axis)
def _gelu(x):
    return torch.nn.functional.gelu(x, approximate="tanh")
def _silu(x):
    return torch.nn.functional.silu(x)
def _sigmoid(x):
    return torch.sigmoid(x)
def _layernorm(x, axis=-1, eps=1e-5):
    m = x.mean(dim=axis, keepdim=True)
    v = x.var(dim=axis, keepdim=True, unbiased=False)
    return (x - m) / torch.sqrt(v + eps)
def _scatter_add(tgt, idx, src, axis=0):
    return tgt.clone().index_add_(axis, idx, src)
def _segment_sum(src, seg, n):
    out = torch.zeros((n,) + src.shape[1:], dtype=src.dtype)
    return out.index_add_(0, seg, src)
def _pad(x, pw):
    flat = tuple(v for pair in reversed(pw) for v in pair)
    return torch.nn.functional.pad(x, flat)

kernel_name = 'concat_heads__sliding_block_cached__mha_block_cached__decode'

def setup_inputs():

    _w = (lambda a: (lambda t: t.to(torch.bfloat16) if t.is_floating_point() else t)(torch.as_tensor(a)))
    def _A_setup():
        B, Sq, D = 1, 1, 448
        Hq, Hkv, Sk, Dh = 16, 8, 8192, 256
        assert Hq % Hkv == 0, (Hq, Hkv)
        return {
            "x": _w((lambda *s: torch.randn(*s, dtype=torch.bfloat16) * 0.8)(B, Sq, D)),
            "k_cache": _w((lambda *s: torch.randn(*s, dtype=torch.bfloat16) * 1.6)(B, Hkv, Sk, Dh)),
            "v_cache": _w((lambda *s: torch.randn(*s, dtype=torch.bfloat16) * 0.2)(B, Hkv, Sk, Dh)),
            "wq": _w((lambda *s: torch.randn(*s, dtype=torch.bfloat16) * 1.6)(D, Hq * Dh) * (D ** -0.5)),
            "wo": _w((lambda *s: torch.randn(*s, dtype=torch.bfloat16) * 0.2)(Hq * Dh, D) * ((Hq * Dh) ** -0.5)),
        }
    _A_in = _A_setup()

    def _B_setup():
        B, Sq, D = 1, 1, 448
        H, Sk, Dh = 16, 8192, 256
        return {
            "x": _w((lambda *s: torch.randn(*s, dtype=torch.bfloat16) * 0.8)(B, Sq, D)),
            "k_cache": _w((lambda *s: torch.randn(*s, dtype=torch.bfloat16) * 1.6)(B, H, Sk, Dh)),
            "v_cache": _w((lambda *s: torch.randn(*s, dtype=torch.bfloat16) * 0.2)(B, H, Sk, Dh)),
            "wq": _w((lambda *s: torch.randn(*s, dtype=torch.bfloat16) * 1.6)(D, H * Dh) * (D ** -0.5)),
            "wo": _w((lambda *s: torch.randn(*s, dtype=torch.bfloat16) * 0.2)(H * Dh, D) * ((H * Dh) ** -0.5)),
        }
    _B_in = _B_setup()

    return {
        "A_x": _A_in["x"],
        "A_k_cache": _A_in["k_cache"],
        "A_v_cache": _A_in["v_cache"],
        "A_wq": _A_in["wq"],
        "A_wo": _A_in["wo"],
        "B_x": _B_in["x"],
        "B_k_cache": _B_in["k_cache"],
        "B_v_cache": _B_in["v_cache"],
        "B_wq": _B_in["wq"],
        "B_wo": _B_in["wo"],
    }

def reference(A_x, A_k_cache, A_v_cache, A_wq, A_wo, B_x, B_k_cache, B_v_cache, B_wq, B_wo):
    def _A_ref(x, k_cache, v_cache, wq, wo):
        B, Sq, D = x.shape
        Hq, Dh = 16, 256
        Hkv, Sk = k_cache.shape[1], k_cache.shape[2]
        W = min(4096, max(256, Sk // 4))
        rep = Hq // Hkv
        q = (lambda x, *d: x.permute(*d))((x @ wq).reshape(B, Sq, Hq, Dh), 0, 2, 1, 3)
        k = (lambda x, n, axis: torch.repeat_interleave(x, n, dim=axis))(k_cache[:, :, Sk - W:, :], rep, axis=1)
        v = (lambda x, n, axis: torch.repeat_interleave(x, n, dim=axis))(v_cache[:, :, Sk - W:, :], rep, axis=1)
        scores = torch.einsum("bhqd,bhkd->bhqk", q, k) * (Dh ** -0.5)
        p = _softmax(scores, axis=-1)
        o = torch.einsum("bhqk,bhkd->bhqd", p, v)
        return (lambda x, *d: x.permute(*d))(o, 0, 2, 1, 3).reshape(B, Sq, Hq * Dh) @ wo

    def _B_ref(x, k_cache, v_cache, wq, wo):
        B, Sq, D = x.shape
        H, Dh = 16, 256
        q = (lambda x, *d: x.permute(*d))((x @ wq).reshape(B, Sq, H, Dh), 0, 2, 1, 3)
        scores = torch.einsum("bhqd,bhkd->bhqk", q, k_cache) * (Dh ** -0.5)
        p = _softmax(scores, axis=-1)
        o = torch.einsum("bhqk,bhkd->bhqd", p, v_cache)
        return (lambda x, *d: x.permute(*d))(o, 0, 2, 1, 3).reshape(B, Sq, H * Dh) @ wo

    a = _A_ref(A_x, A_k_cache, A_v_cache, A_wq, A_wo)
    b = _B_ref(B_x, B_k_cache, B_v_cache, B_wq, B_wo)
    return torch.concatenate([a, b], axis=-1)
```

```python
NAME = "concat_heads__sliding_block_cached__mha_block_cached__decode"
HDR_COMMENT = open("cdna_kernels/%s.s.ref" % NAME).read().split("; Override launch")[0]

class Asm:
    def __init__(self):
        self.l = []
    def __call__(self, s):
        for x in s.strip("\n").split("\n"):
            self.l.append("    " + x.strip() if not x.strip().endswith(":") else x.strip())
    def text(self):
        return "\n".join(self.l) + "\n"

def kernel_file(body, grid, block, lds, vgpr=256, sgpr=102, accum=None, name=None):
    name = name or (NAME + "_kernel")
    accum = accum or ((min(vgpr, 256) + 3) // 4 * 4)
    s = HDR_COMMENT
    s += "; @launch grid=(%d,1,1) block=(%d,1,1) lds=%d\n" % (grid, block, lds)
    s += '.amdgcn_target "amdgcn-amd-amdhsa--gfx950"\n.text\n'
    s += ".globl %s\n.p2align 8\n.type %s,@function\n%s:\n" % (name, name, name)
    s += body
    s += '.section .rodata,"a"\n.p2align 6\n.amdhsa_kernel %s\n' % name
    s += "  .amdhsa_next_free_vgpr %d\n  .amdhsa_next_free_sgpr %d\n  .amdhsa_accum_offset %d\n" % (vgpr, sgpr, accum)
    s += "  .amdhsa_group_segment_fixed_size 0\n  .amdhsa_kernarg_size 104\n  .amdhsa_user_sgpr_count 2\n"
    s += "  .amdhsa_user_sgpr_kernarg_segment_ptr 1\n  .amdhsa_system_sgpr_workgroup_id_x 1\n"
    s += ".end_amdhsa_kernel\n"
    return s
```

```python
import re
TRANS = ("v_exp_f32", "v_rcp_f32", "v_log_f32", "v_rsq_f32", "v_sqrt_f32")
def regs(tok, kind):
    tok = tok.strip().lstrip("-").strip("|")
    m = re.fullmatch(kind + r"(\d+)", tok)
    if m: return {int(m.group(1))}
    m = re.fullmatch(kind + r"\[(\d+):(\d+)\]", tok)
    if m: return set(range(int(m.group(1)), int(m.group(2)) + 1))
    if kind == "s" and tok == "vcc": return {106, 107}
    return set()
class I: pass
def parse(line):
    s = line.split(";")[0].strip()
    if not s or s.endswith(":") or s.startswith("."): return None
    p = s.split(None, 1)
    i = I(); i.op = p[0]; rest = p[1] if len(p) > 1 else ""
    rest = re.sub(r"(quad_perm|op_sel|op_sel_hi|neg_lo|neg_hi):\[(\d+),(\d+)(?:,(\d+))?(?:,(\d+))?\]", r"\1:X", rest)
    ops = [x.strip() for x in rest.split(",")]
    if ops:
        last = ops[-1].split()
        i.mods = " ".join(last[1:]) if last else ""
        ops[-1] = last[0] if last else ""
    op = i.op
    i.vw = set(); i.vr = set(); i.sw = set(); i.sr = set(); i.srcC = set(); i.srcAB = set(); i.data = set()
    i.valu = op.startswith("v_") and not op.startswith("v_mfma")
    i.mfma = op.startswith("v_mfma")
    i.vmem = op.startswith(("buffer_", "global_"))
    i.ds = op.startswith("ds_")
    i.dpp = i.valu and ("_dpp" in op or any(k in i.mods for k in ("row_", "quad_perm")))
    i.perm = op.startswith("v_permlane")
    i.dot = op.startswith("v_dot2")
    i.trans = op.replace("_e32", "").replace("_e64", "") in TRANS
    i.rl = op.startswith(("v_readlane", "v_readfirstlane"))
    i.nop = int(ops[0], 0) + 1 if op == "s_nop" else 1
    V = lambda t: regs(t, "v"); S = lambda t: regs(t, "s")
    if i.mfma:
        i.vw = V(ops[0]); i.srcAB = V(ops[1]) | V(ops[2]); i.srcC = V(ops[3]); i.vr = i.srcAB | i.srcC
    elif i.valu:
        if i.perm:
            i.vw = V(ops[0]) | V(ops[1]); i.vr = set(i.vw)
        elif op.startswith("v_cmp") or i.rl:
            i.sw = S(ops[0])
            for t in ops[1:]: i.vr |= V(t); i.sr |= S(t)
        else:
            i.vw = V(ops[0])
            for t in ops[1:]: i.vr |= V(t); i.sr |= S(t)
            if op.startswith(("v_fmac", "v_dot2c")) or (i.dpp and "bank_mask:0xf" not in i.mods): i.vr |= i.vw
            if i.dot:
                i.srcAB = V(ops[1]) | V(ops[2])
    elif i.vmem:
        if "load" in op and "lds" not in i.mods:
            i.vw = V(ops[0]); rd = ops[1:]
        elif "atomic" in op and "sc0" in i.mods and op.startswith("global"):
            i.vw = V(ops[0]); rd = ops[1:]
        else:
            rd = ops
            if "x4" in op or "x3" in op:
                i.data = V(ops[0]) if op.startswith("buffer") else V(ops[1])
        for t in rd: i.vr |= V(t); i.sr |= S(t)
    elif i.ds:
        if "read" in op or "permute" in op or "swizzle" in op:
            i.vw = V(ops[0]); rd = ops[1:]
        else: rd = ops
        for t in rd: i.vr |= V(t)
    return i
def need(p, c):
    n = 0
    base = lambda o: o.replace("_e32", "").replace("_e64", "").replace("_dpp", "")
    if p.valu:
        if c.dpp and p.vw & c.vr: n = max(n, 2)
        if c.perm and p.vw & c.vr: n = max(n, 2)
        if c.mfma and p.vw & c.vr: n = max(n, 3 if p.dot else 2)
        if c.rl and p.vw & c.vr: n = max(n, 1)
        if p.trans and c.valu and not c.trans and p.vw & c.vr: n = max(n, 1)
        if p.trans and c.valu and p.vw & c.vr: n = max(n, 1)
        if p.dot and p.vw & (c.vr | c.vw):
            if c.dot and base(c.op) == base(p.op):
                if p.vw & c.srcAB: n = max(n, 3)
            else: n = max(n, 3)
        if p.sw:
            if c.valu and (p.sw & c.sr or (c.op.startswith("v_cndmask") and p.sw & {106})): n = max(n, 4 if c.rl else 2)
            if c.vmem and p.sw & c.sr: n = max(n, 5)
    if p.mfma:
        passes = 8 if "32x32" in p.op else 4
        if c.mfma:
            if p.vw & c.srcC and not (c.srcC == p.vw and c.op == p.op): n = max(n, passes + 2)
            if p.vw & c.srcAB: n = max(n, passes + 4)
            if p.vw & c.vw and not (c.srcC == p.vw): n = max(n, passes + 2)
        elif (c.valu or c.vmem or c.ds) and p.vw & (c.vr | c.vw): n = max(n, passes + 4)
        if c.valu and p.srcC & c.vw: n = max(n, passes - 1)
    if p.data and (c.valu or c.vmem or c.ds) and p.data & c.vw: n = max(n, 2)
    return n
def fix(text):
    out = []; hist = []
    added = 0
    for line in text.split("\n"):
        c = parse(line)
        if c is None:
            out.append(line); continue
        dist = 0; req = 0
        for p in reversed(hist[-24:]):
            req = max(req, need(p, c) - dist)
            dist += p.nop
            if dist >= 14: break
        if req > 0:
            nl = "    s_nop %d" % (req - 1)
            out.append(nl); hist.append(parse(nl)); added += req
        out.append(line); hist.append(c)
    return "\n".join(out), added
```

```python
import sys, argparse
from asmlib import *
import hazard

REC = 3584
ML = 256 * REC
YB = ML + 8 * 6144
WS_USED = YB + 112 * 4096
P1 = 0
L_Q = 0; L_OP = 2048; LDS_BYTES = L_OP + 8 * 3072
STAMP_OFF = 128 << 20
SPIN_MAX = 1 << 20

def gen(stamps=False, local=False, pol="nt", polw="nt", sleepq=4, sleepm=8, sleep1=0, sleep2=0, cl=4, prio=3, early=0, st="sc1", ld="sc1", clr_first=False, kprio=2):
    a = Asm()
    def stamp(k):
        if stamps:
            a("s_memrealtime s[100:101]\ns_waitcnt lgkmcnt(0)\nv_writelane_b32 v31, s100, %d" % k)
    KB, VB, KA, VA, WS, WQ, XS, WO, OUT, DBG = [44 + 4 * i for i in range(10)]
    def srd(r): return "s[%d:%d]" % (r, r + 3)
    def v4(r): return "v[%d:%d]" % (r, r + 3)
    KS = lambda u: 64 + 16 * u
    VS = lambda u: (208 + 16 * u) if u < 3 else KS(u - 3)
    WOR = KS(6)
    FULL = "row_mask:0xf bank_mask:0xf"
    a("""
    s_cmp_ge_u32 s2, 256
    s_cbranch_scc1 L_end
    s_load_dwordx16 s[16:31], s[0:1], 0
    s_load_dwordx8 s[32:39], s[0:1], 64
    s_load_dwordx2 s[40:41], s[0:1], 96
    v_lshrrev_b32 v1, 6, v0
    v_and_b32 v0, 63, v0
    v_readfirstlane_b32 s4, v1
    """)
    if stamps: a("v_mov_b32 v31, 0")
    if local:
        a("s_and_b32 s3, s2, 7\ns_lshl_b32 s3, s3, 5\ns_lshr_b32 s7, s2, 3\ns_or_b32 s3, s3, s7")
    else:
        a("s_mov_b32 s3, s2")
    a("""
    s_lshr_b32 s5, s3, 5
    s_and_b32 s6, s3, 31
    s_mov_b32 s%d, %d
    s_mov_b32 s%d, 0x20000
    s_cmp_lg_u32 s4, 0
    s_cbranch_scc1 L_setup
    """ % (WS + 2, WS_USED, WS + 3))
    a("""
    s_setprio %d
    s_mov_b32 s%d, %d
    s_mov_b32 s%d, 0x20000
    s_mov_b32 s%d, 896
    s_mov_b32 s%d, 0x20000
    s_and_b32 s85, s6, 1
    s_mul_i32 s86, s85, 448
    s_mul_i32 s85, s85, %d
    s_bfe_u32 s7, s6, 0x30001
    s_lshl_b32 s7, s7, 7
    s_add_u32 s85, s85, s7
    s_lshl_b32 s7, s5, 10
    s_add_u32 s85, s85, s7
    v_lshrrev_b32 v2, 3, v0
    v_mul_u32_u24 v3, 56, v2
    v_mul_u32_u24 v2, %d, v2
    v_and_b32 v8, 7, v0
    v_lshl_add_u32 v2, v8, 4, v2
    s_mul_i32 s87, s3, %d
    s_mul_i32 s88, s3, 1792
    s_add_u32 s88, s88, %d
    s_mul_i32 s89, s5, 6144
    s_lshl_b32 s7, s6, 6
    s_add_u32 s89, s89, s7
    s_add_u32 s89, s89, %d
    v_mov_b32 v24, -1
    v_mov_b32 v25, -1
    v_mov_b32 v26, -1
    v_mov_b32 v27, -1
    v_lshlrev_b32 v28, 4, v0
    v_lshrrev_b32 v29, 2, v0
    v_lshlrev_b32 v29, 11, v29
    v_and_b32 v8, 3, v0
    v_lshl_add_u32 v29, v8, 4, v29
    s_cmp_ge_u32 s6, 16
    s_waitcnt lgkmcnt(0)
    s_cselect_b32 s%d, s22, s32
    s_cselect_b32 s%d, s23, s33
    s_cselect_b32 s%d, s16, s26
    s_cselect_b32 s%d, s17, s27
    """ % (prio, WQ + 2, 448 * 8192, WQ + 3, XS + 2, XS + 3, 224 * 8192, 28 * 8192, REC, YB, ML, WQ, WQ + 1, XS, XS + 1))
    def clears():
        a("""
        s_mov_b32 s%d, s40
        s_mov_b32 s%d, s41
        buffer_store_dwordx4 v[24:27], v28, %s, s87 offen ST
        buffer_store_dwordx4 v[24:27], v28, %s, s87 offen offset:1024 ST
        buffer_store_dwordx4 v[24:27], v28, %s, s87 offen offset:2048 ST
        buffer_store_dwordx4 v[24:27], v28, %s, s88 offen ST
        s_mov_b32 exec_hi, 0xffff
        buffer_store_dwordx4 v[24:27], v28, %s, s88 offen offset:1024 ST
        s_mov_b64 exec, 0x1ffff
        buffer_store_dwordx4 v[24:27], v28, %s, s87 offen offset:3072 ST
        s_mov_b64 exec, 0xfff
        buffer_store_dwordx4 v[24:27], v29, %s, s89 offen ST
        s_mov_b64 exec, -1
        """.replace("ST", st) % ((WS, WS + 1) + (srd(WS),) * 7))
    if clr_first: clears()
    for i in range(28):
        a("buffer_load_dwordx4 %s, v2, %s, s85 offen %s" % (v4(64 + 4 * i), srd(WQ), polw))
        if i < 27: a("s_add_u32 s85, s85, 8192")
        if i == 0:
            a("""
            buffer_load_dwordx4 v[8:11], v3, %s, s86 offen
            buffer_load_dwordx4 v[12:15], v3, %s, s86 offen offset:16
            buffer_load_dwordx4 v[16:19], v3, %s, s86 offen offset:32
            buffer_load_dwordx2 v[20:21], v3, %s, s86 offen offset:48
            """ % ((srd(XS),) * 4))
    if not clr_first: clears()
    a("L_setup:")
    a("""
    v_lshrrev_b32 v1, 4, v0
    v_lshlrev_b32 v1, 9, v1
    v_and_b32 v30, 15, v0
    v_lshl_add_u32 v1, v30, 4, v1
    s_lshr_b32 s7, s4, 2
    s_lshl_b32 s8, s7, 8
    s_lshl_b32 s42, s7, 7
    s_and_b32 s7, s4, 3
    s_add_u32 s8, s8, s7
    s_add_u32 s42, s42, s7
    s_and_b32 s7, s3, 7
    s_lshl_b32 s7, s7, 2
    s_add_u32 s8, s8, s7
    s_lshr_b32 s43, s3, 3
    s_lshl_b32 s7, s43, 4
    s_add_u32 s8, s8, s7
    s_lshl_b32 s8, s8, 12
    s_lshl_b32 s7, s6, 2
    s_add_u32 s42, s42, s7
    s_lshl_b32 s7, s5, 5
    s_add_u32 s42, s42, s7
    s_lshl_b32 s42, s42, 12
    s_and_b32 s42, s42, 0xfffff
    """)
    for s in range(7, 0, -1):
        a("s_add_u32 s%d, s8, %d\ns_and_b32 s%d, s%d, 0x1fffff" % (8 + s, s * 32 * 4096, 8 + s, 8 + s))
    a("s_and_b32 s8, s8, 0x1fffff")
    a("""
    s_lshl_b32 s43, s43, 21
    s_lshl_b32 s7, s5, 22
    s_add_u32 s7, s7, %d
    s_mov_b32 s%d, 0x100000
    s_mov_b32 s%d, 0x20000
    s_mov_b32 s%d, 0x100000
    s_mov_b32 s%d, 0x20000
    s_mov_b32 s%d, 0x200000
    s_mov_b32 s%d, 0x20000
    s_mov_b32 s%d, 0x200000
    s_mov_b32 s%d, 0x20000
    s_waitcnt lgkmcnt(0)
    s_add_u32 s%d, s18, s7
    s_addc_u32 s%d, s19, 0
    s_add_u32 s%d, s28, s43
    s_addc_u32 s%d, s29, 0
    s_add_u32 s%d, s20, s7
    s_addc_u32 s%d, s21, 0
    s_add_u32 s%d, s30, s43
    s_addc_u32 s%d, s31, 0
    s_mov_b32 s%d, s40
    s_mov_b32 s%d, s41
    """ % (6144 * 512, KA + 2, KA + 3, VA + 2, VA + 3, KB + 2, KB + 3, VB + 2, VB + 3,
           KA, KA + 1, KB, KB + 1, VA, VA + 1, VB, VB + 1, WS, WS + 1))
    stamp(0)
    a("s_barrier")
    a("s_cmp_eq_u32 s4, 0\ns_cbranch_scc1 L_service")
    a("L_stream:")
    cnt = [0]
    def ld_unit(r, sr, so):
        for n, o in enumerate((0, 256, 2048, 2304)):
            a("buffer_load_dwordx4 %s, v1, %s, %s offen offset:%d %s" % (v4(r + 4 * n), srd(sr), so, o, pol))
            cnt[0] += 1
            if cl and cnt[0] % cl == 0: a("s_nop 0")
    def ldK(u): ld_unit(KS(u), KA if u == 0 else KB, "s42" if u == 0 else "s%d" % (7 + u))
    def ldV(u): ld_unit(VS(u), VA if u == 0 else VB, "s42" if u == 0 else "s%d" % (7 + u))
    for u in range(9): ldK(u)
    for u in range(3): ldV(u)
    def masks():
        a("""
        v_and_b32 v2, 1, v0
        v_lshlrev_b32 v2, 4, v2
        v_mov_b32 v3, 0xffff
        v_lshlrev_b32 v2, v2, v3
        v_bfe_u32 v3, v0, 1, 2
        """)
        for r in range(4):
            a("v_cmp_eq_u32 vcc, %d, v3\nv_cndmask_b32 v%d, 0, v2, vcc" % (r, 4 + r))
    masks()
    a("""
    s_cmp_ge_u32 s6, 16
    s_cselect_b32 s%d, s24, s34
    s_cselect_b32 s%d, s25, s35
    s_mov_b32 s%d, %d
    s_mov_b32 s%d, 0x20000
    s_mov_b32 s%d, s36
    s_mov_b32 s%d, s37
    s_mov_b32 s%d, 1792
    s_mov_b32 s%d, 0x20000
    s_mov_b32 s84, 0x3db8aa3b
    v_and_b32 v2, 15, v0
    v_lshlrev_b32 v2, 4, v2
    """ % (WO, WO + 1, WO + 2, 4096 * 896, WO + 3, OUT, OUT + 1, OUT + 2, OUT + 3))
    stamp(1)
    a("s_barrier")
    stamp(2)
    a("s_setprio %d" % kprio)
    for h in range(3):
        a("ds_read_b128 %s, v2 offset:%d" % (v4(32 + 8 * h), L_Q + 512 * h))
        a("ds_read_b128 %s, v2 offset:%d" % (v4(36 + 8 * h), L_Q + 512 * h + 256))
    a("s_waitcnt lgkmcnt(0)")
    def red3(rs):
        for m in ("row_half_mirror", "quad_perm:[2,3,0,1]", "quad_perm:[1,0,3,2]"):
            for r in rs:
                a("v_add_f32_dpp v%d, v%d, v%d %s %s" % (r, r, r, m, FULL))
    issuedV = 0
    for u in range(9):
        a("s_waitcnt vmcnt(%d)" % ((8 - u) * 4 + 12 + 4 * issuedV))
        k = KS(u)
        if u == 0:
            ch = [(56, k, 40), (57, k, 48), (58, k + 8, 40), (59, k + 8, 48)]
        else:
            t = 56 + 2 * (u % 2)
            ch = [(t, k, 32), (t + 1, k + 8, 32)]
        for c, _, _ in ch: a("v_mov_b32 v%d, 0" % c)
        for e in range(8):
            for c, kk, q in ch:
                a("v_dot2c_f32_bf16 v%d, v%d, v%d" % (c, kk + e, q + e))
        if u < early:
            ldV(u + 3); issuedV += 1
        s0 = 8 + 2 * u
        if u == 0:
            for bm, o in ((0x3, 0), (0xc, 1)):
                for g in range(2):
                    a("v_add_f32_dpp v%d, v%d, v%d row_ror:8 row_mask:0xf bank_mask:0x%x" % (s0 + g, 56 + 2 * g + o, 56 + 2 * g + o, bm))
        else:
            for g in range(2):
                a("v_add_f32_dpp v%d, v%d, v%d row_ror:8 %s" % (s0 + g, ch[g][0], ch[g][0], FULL))
        red3([s0, s0 + 1])
        a("v_cvt_pk_bf16_f32 v%d, v%d, v%d" % (s0 + 1, s0, s0 + 1))
        a("v_lshlrev_b32 v%d, 16, v%d" % (s0, s0 + 1))
        a("v_and_b32 v%d, 0xffff0000, v%d" % (s0 + 1, s0 + 1))
    a("v_max_f32 v26, v8, v9")
    a("v_max3_f32 v28, v10, v11, v12")
    for r in range(13, 25, 2): a("v_max3_f32 v28, v28, v%d, v%d" % (r, r + 1))
    a("v_max_f32 v28, v28, v25")
    for sw in ("v_permlane16_swap_b32", "v_permlane32_swap_b32"):
        a("v_mov_b32 v56, v26\nv_mov_b32 v57, v28\n%s v26, v56\n%s v28, v57\nv_max_f32 v26, v26, v56\nv_max_f32 v28, v28, v57" % (sw, sw))
    a("v_mul_f32 v26, s84, v26\nv_mul_f32 v28, s84, v28")
    for r in range(8, 26):
        a("v_fma_f32 v%d, v%d, s84, -v%d" % (r, r, 26 if r < 10 else 28))
    for r in range(8, 26):
        a("v_exp_f32 v%d, v%d" % (r, r))
    a("v_add_f32 v27, v8, v9")
    a("v_add_f32 v29, v10, v11\nv_add_f32 v30, v12, v13")
    for r in range(14, 26, 2): a("v_add_f32 v29, v29, v%d\nv_add_f32 v30, v30, v%d" % (r, r + 1))
    a("v_add_f32 v29, v29, v30")
    for sw in ("v_permlane16_swap_b32", "v_permlane32_swap_b32"):
        a("v_mov_b32 v56, v27\nv_mov_b32 v57, v29\n%s v27, v56\n%s v29, v57\nv_add_f32 v27, v27, v56\nv_add_f32 v29, v29, v57" % (sw, sw))
    a("""
    s_mul_i32 s85, s5, 6144
    s_lshl_b32 s7, s6, 6
    s_add_u32 s85, s85, s7
    s_lshl_b32 s7, s4, 3
    s_add_u32 s85, s85, s7
    s_add_u32 s85, s85, %d
    v_cmp_eq_u32 vcc, 16, v0
    v_lshlrev_b32 v2, 8, v0
    v_add_u32 v2, 2048, v2
    v_cndmask_b32 v56, v26, v28, vcc
    v_cndmask_b32 v57, v27, v29, vcc
    v_cndmask_b32 v2, v2, 0, vcc
    s_mov_b64 exec, 0x10101
    buffer_store_dwordx2 v[56:57], v2, %s, s85 offen %s
    s_mov_b64 exec, -1
    """ % (ML, srd(WS), st))
    a.l = [x.replace("v_cndmask_b32 v2, v2, 0, vcc", "v_cndmask_b32_e64 v2, v2, 0, vcc") for x in a.l]
    a("s_setprio 0")
    stamp(13)
    for u in range(early, 6): ldV(u + 3)
    a("""
    s_bfe_u32 s85, s6, 0x10003
    s_lshl_b32 s7, s5, 1
    s_add_u32 s85, s85, s7
    s_lshl_b32 s85, s85, 3
    s_and_b32 s7, s6, 7
    s_add_u32 s85, s85, s7
    s_mul_i32 s85, s85, %d
    s_and_b32 s7, s4, 3
    s_lshl_b32 s7, s7, 8
    s_add_u32 s85, s85, s7
    s_add_u32 s86, s85, %d
    s_cmp_ge_u32 s4, 4
    s_cselect_b32 s%d, s%d, 0
    s_mov_b32 s%d, s%d
    s_mov_b32 s%d, s%d
    s_mov_b32 s%d, 0x20000
    s_cmp_eq_u32 s4, 7
    s_cselect_b32 s%d, 0, s%d
    v_bfe_u32 v2, v0, 4, 1
    v_bfe_u32 v3, v0, 5, 1
    v_lshl_add_u32 v2, v2, 1, v3
    v_bfe_u32 v3, v0, 3, 1
    v_lshl_add_u32 v2, v3, 4, v2
    v_mul_u32_u24 v2, 896, v2
    v_and_b32 v3, 7, v0
    v_lshl_add_u32 v2, v3, 4, v2
    """ % (32 * 896, 8 * 896, WO + 2, WO + 2, WQ, WO, WQ + 1, WO + 1, WQ + 3, WQ + 2, WO + 2))
    for s in range(4):
        for b in range(2):
            a("buffer_load_dwordx4 %s, v2, %s, s%d offen offset:%d %s" % (v4(WOR + 8 * s + 4 * b), srd(WQ if b else WO), 85 + s // 2, (s % 2) * 3584 + b * 128, polw))
    stamp(3)
    for r in range(8, 26):
        a("v_cvt_pk_bf16_f32 v%d, v%d, v%d" % (r, r, r))
    a("""
    s_mul_i32 s7, s4, 3072
    v_and_b32 v2, 15, v0
    v_lshlrev_b32 v2, 5, v2
    v_bfe_u32 v3, v0, 4, 1
    v_lshl_add_u32 v2, v3, 4, v2
    v_add_u32 v2, s7, v2
    v_bfe_u32 v3, v0, 5, 1
    v_lshl_add_u32 v3, v3, 10, v2
    """)
    for u in range(9):
        for g in range(2):
            f = 48 + 4 * g
            for r in range(4): a("v_and_b32 v%d, v%d, v%d" % (f + r, 8 + 2 * u + g, 4 + r))
        a("s_waitcnt vmcnt(%d)" % ((8 - u) * 4 + 8 + (1 if u < 3 + early else 0)))
        acc = 40 if u == 0 else 32
        for g in range(2):
            for d in range(2):
                first = (u in (0, 1)) and g == 0
                a("v_mfma_f32_16x16x32_bf16 %s, %s, %s, %s" % (v4(acc + 4 * d), v4(48 + 4 * g), v4(VS(u) + 8 * g + 4 * d), "0" if first else v4(acc + 4 * d)))
        if u == 2:
            a("ds_write_b128 v3, v[40:43] offset:%d\nds_write_b128 v3, v[44:47] offset:%d" % (L_OP + 1024, L_OP + 1024 + 512))
    a("s_cmp_ge_u32 s4, 3")
    a("ds_write_b128 v2, v[32:35] offset:%d\nds_write_b128 v2, v[36:39] offset:%d" % (L_OP, L_OP + 512))
    stamp(4)
    a("s_cbranch_scc1 L_late")
    a("""
    s_mul_i32 s85, s5, 6144
    s_add_u32 s85, s85, %d
    s_lshr_b32 s7, s6, 4
    s_lshl_b32 s7, s7, 10
    s_lshl_b32 s86, s4, 11
    s_cmp_eq_u32 s4, 0
    s_cselect_b32 s7, s7, s86
    s_cselect_b32 s87, 10, 11
    s_cselect_b32 s88, 0.5, 1.0
    s_bfm_b32 s87, s87, 0
    s_add_u32 s85, s85, s7
    s_lshl_b32 s7, s6, 6
    v_lshlrev_b32 v2, 4, v0
    v_add_u32 v8, s7, v2
    v_add_u32 v9, 1024, v8
    v_and_b32 v8, s87, v8
    v_and_b32 v9, s87, v9
    s_mov_b32 s92, 0
    L_pollm:
    buffer_load_dwordx4 v[64:67], v8, %s, s85 offen %s
    buffer_load_dwordx4 v[68:71], v9, %s, s85 offen %s
    s_waitcnt vmcnt(0)
    v_max3_u32 v10, v64, v65, v66
    v_max3_u32 v11, v67, v68, v69
    v_max3_u32 v10, v10, v70, v71
    v_max_u32 v10, v10, v11
    v_cmp_eq_u32 vcc, -1, v10
    s_cbranch_vccz L_gotm
    s_sleep %d
    s_add_u32 s92, s92, 1
    s_cmp_lt_u32 s92, %d
    s_cbranch_scc1 L_pollm
    L_gotm:
    v_max3_f32 v10, v64, v66, v68
    v_max_f32 v10, v10, v70
    """ % (ML, srd(WS), ld, srd(WS), ld, sleepm, SPIN_MAX))
    def allred(op, r, t):
        for m in ("quad_perm:[1,0,3,2]", "quad_perm:[2,3,0,1]", "row_half_mirror", "row_ror:8"):
            a("%s_dpp v%d, v%d, v%d %s %s" % (op, r, r, r, m, FULL))
        for sw in ("v_permlane16_swap_b32", "v_permlane32_swap_b32"):
            a("v_mov_b32 v%d, v%d\n%s v%d, v%d\n%s v%d, v%d, v%d" % (t, r, sw, r, t, op, r, r, t))
    allred("v_max_f32", 10, 11)
    for k in range(4): a("v_sub_f32 v%d, v%d, v10" % (64 + 2 * k, 64 + 2 * k))
    for k in range(4): a("v_exp_f32 v%d, v%d" % (64 + 2 * k, 64 + 2 * k))
    a("v_mul_f32 v10, v64, v65")
    for k in range(1, 4): a("v_fmac_f32 v10, v%d, v%d" % (64 + 2 * k, 65 + 2 * k))
    allred("v_add_f32", 10, 11)
    a("""
    v_mul_f32 v10, s88, v10
    v_rcp_f32 v10, v10
    v_mul_f32 v64, v64, v10
    v_mul_f32 v66, v66, v10
    s_lshl_b32 s7, s4, 10
    v_add_u32 v8, s7, v2
    s_mul_i32 s85, s3, %d
    """ % REC)
    for w in range(8): a("v_readlane_b32 s%d, v%d, %d" % (16 + w, 64 + 2 * (w % 2), w // 2))
    stamp(14)
    a("s_waitcnt lgkmcnt(0)\ns_barrier")
    stamp(5)
    for w in range(8): a("ds_read_b128 %s, v8 offset:%d" % (v4(80 + 4 * w), L_OP + 3072 * w))
    for w in range(8):
        a("s_waitcnt lgkmcnt(%d)" % (7 - w))
        for r in range(4):
            if w == 0: a("v_mul_f32 v%d, s16, v%d" % (12 + r, 80 + r))
            else: a("v_fmac_f32 v%d, s%d, v%d" % (12 + r, 16 + w, 80 + 4 * w + r))
    a("""
    buffer_store_dwordx4 v[12:15], v8, %s, s85 offen %s
    s_branch L_fin
    """ % (srd(WS), st))
    a("L_late:")
    a("""
    s_cmp_lg_u32 s4, 3
    s_cbranch_scc1 L_late2
    s_mov_b32 s%d, s38
    s_mov_b32 s%d, s39
    s_mov_b32 s%d, 256
    s_mov_b32 s%d, 0x20000
    v_and_b32 v8, 7, v0
    v_lshlrev_b32 v8, 5, v8
    s_mov_b32 s92, 0
    L_pollc:
    buffer_load_dword v9, v8, %s, 0 offen %s
    s_waitcnt vmcnt(0)
    v_cmp_ne_u32 vcc, 32, v9
    s_cbranch_vccz L_late2
    s_sleep 8
    s_add_u32 s92, s92, 1
    s_cmp_lt_u32 s92, %d
    s_cbranch_scc1 L_pollc
    L_late2:
    """ % (DBG, DBG + 1, DBG + 2, DBG + 3, srd(DBG), ld, SPIN_MAX))
    a("s_waitcnt lgkmcnt(0)\ns_barrier")
    stamp(5)
    a("s_cmp_eq_u32 s4, 3\ns_cbranch_scc1 L_fin")
    a("""
    s_lshr_b32 s7, s6, 3
    s_cmp_ge_u32 s6, 16
    s_cselect_b64 s[20:21], -1, 0
    s_cselect_b64 s[22:23], -1, 0
    s_cselect_b32 s88, 0, s7
    s_cselect_b32 s89, s7, 1
    s_sub_u32 s89, s89, 1
    s_lshl_b32 s88, s88, 4
    s_lshl_b32 s7, s5, 5
    s_add_u32 s88, s88, s7
    s_mul_i32 s90, s88, RECC
    s_lshl_b32 s7, s89, 10
    s_add_u32 s90, s90, s7
    s_and_b32 s7, s6, 7
    s_lshl_b32 s7, s7, 7
    s_add_u32 s90, s90, s7
    s_add_u32 s90, s90, %d
    s_add_u32 s91, s90, %d
    s_add_u32 s93, s90, %d
    s_add_u32 s94, s90, %d
    v_lshrrev_b32 v2, 3, v0
    v_and_b32 v3, 7, v0
    v_lshlrev_b32 v3, 4, v3
    v_mul_u32_u24 v8, RECC, v2
    v_add_u32 v8, v8, v3
    s_mov_b64 s[16:17], -1
    s_mov_b64 s[18:19], -1
    s_mov_b32 s92, 0
    """.replace("RECC", str(REC)) % (P1, 8 * REC, 16 * REC, 24 * REC))
    for r in range(72, 80): a("v_mov_b32 v%d, 0" % r)
    def poll4(name, addr, sleep):
        a("L_%s:" % name)
        for k in range(4):
            a("s_mov_b64 exec, s[%d:%d]" % (16 + 2 * k, 17 + 2 * k))
            a("s_cbranch_execz L_%ss%d" % (name, k))
            a("buffer_load_dwordx4 %s, %s" % (v4(64 + 4 * k), addr(k)))
            a("L_%ss%d:" % (name, k))
        a("s_mov_b64 exec, -1\ns_waitcnt vmcnt(0)")
        for k in range(4):
            a("v_max3_u32 v%d, v%d, v%d, v%d" % (16 + k, 64 + 4 * k, 65 + 4 * k, 66 + 4 * k))
        for k in range(4):
            a("v_max_u32 v%d, v%d, v%d" % (16 + k, 16 + k, 67 + 4 * k))
        for k in range(4):
            a("v_cmp_eq_u32 s[%d:%d], -1, v%d" % (16 + 2 * k, 17 + 2 * k, 16 + k))
        a("""
        s_or_b64 s[24:25], s[16:17], s[18:19]
        s_or_b64 s[26:27], s[20:21], s[22:23]
        s_or_b64 s[24:25], s[24:25], s[26:27]
        s_cbranch_scc0 L_%sg
        """ % name)
        if sleep: a("s_sleep %d" % sleep)
        a("""
        s_add_u32 s92, s92, 1
        s_cmp_lt_u32 s92, %d
        s_cbranch_scc1 L_%s
        L_%sg:
        """ % (SPIN_MAX, name, name))
    a("""
    s_cmp_ge_u32 s6, 16
    s_cselect_b32 s85, 0, 56
    s_and_b32 s7, s4, 3
    s_lshl_b32 s7, s7, 4
    s_add_u32 s85, s85, s7
    s_lshl_b32 s85, s85, 12
    s_lshl_b32 s7, s5, 4
    s_and_b32 s86, s6, 15
    s_add_u32 s7, s7, s86
    s_lshl_b32 s7, s7, 5
    s_add_u32 s85, s85, s7
    s_add_u32 s85, s85, %d
    s_cmp_eq_u32 s4, 7
    s_cselect_b32 s87, 0, 0x00ff00ff
    v_lshrrev_b32 v2, 5, v0
    v_and_b32 v3, 7, v0
    v_lshl_add_u32 v2, v2, 3, v3
    v_lshlrev_b32 v2, 12, v2
    v_bfe_u32 v3, v0, 4, 1
    v_lshl_add_u32 v2, v3, 4, v2
    """ % YB)
    poll4("p1", lambda k: "v8, %s, s%d offen %s" % (srd(WS), (90, 91, 93, 94)[k], ld), sleep1)
    stamp(6)
    def sum4():
        for r in range(4): a("v_add_f32 v%d, v%d, v%d\nv_add_f32 v%d, v%d, v%d" % (64 + r, 64 + r, 68 + r, 72 + r, 72 + r, 76 + r))
        for r in range(4): a("v_add_f32 v%d, v%d, v%d" % (64 + r, 64 + r, 72 + r))
        a("""
        v_permlane32_swap_b32 v64, v65
        v_permlane32_swap_b32 v66, v67
        v_add_f32 v64, v64, v65
        v_add_f32 v66, v66, v67
        v_permlane16_swap_b32 v64, v66
        v_add_f32 v64, v64, v66
        """)
    sum4()
    a("v_add_f32_dpp v64, v64, v64 row_ror:8 %s" % FULL)
    a("v_cvt_pk_bf16_f32 v20, v64, v64")
    for bm, o in ((0x3, 0), (0xc, 4)):
        for s in range(4):
            a("v_mov_b32_dpp v%d, v20 row_newbcast:%d row_mask:0xf bank_mask:0x%x" % (24 + s, s + o, bm))
    for s in range(4):
        for r in range(4): a("v_and_b32 v%d, v%d, v%d" % (88 + 4 * s + r, 24 + s, 4 + r))
        if s >= 1:
            for b in range(2):
                a("v_mfma_f32_16x16x32_bf16 %s, %s, %s, %s" % (v4(32 + 4 * b), v4(88 + 4 * (s - 1)), v4(WOR + 8 * (s - 1) + 4 * b), "0" if s == 1 else v4(32 + 4 * b)))
    for b in range(2):
        a("v_mfma_f32_16x16x32_bf16 %s, %s, %s, %s" % (v4(32 + 4 * b), v4(100), v4(WOR + 24 + 4 * b), v4(32 + 4 * b)))
    for r in range(4): a("v_permlane32_swap_b32 v%d, v%d" % (32 + r, 36 + r))
    for r in range(4): a("v_add_f32_dpp v%d, v%d, v%d row_ror:8 %s" % (32 + r, 36 + r, 32 + r, FULL))
    a("""
    s_mov_b32 exec_lo, 0x00ff00ff
    s_mov_b32 exec_hi, s87
    buffer_store_dwordx4 v[32:35], v2, %s, s85 offen %s
    s_mov_b64 exec, -1
    """ % (srd(WS), st))
    stamp(7)
    a("""
    s_cmp_lg_u32 s4, 4
    s_cbranch_scc1 L_fin
    s_cmp_ge_u32 s3, 112
    s_cbranch_scc1 L_fin
    s_lshl_b32 s85, s3, 12
    s_add_u32 s85, s85, %d
    v_lshlrev_b32 v8, 4, v0
    v_bfe_u32 v2, v0, 4, 1
    v_bfe_u32 v3, v0, 5, 1
    v_lshl_add_u32 v2, v2, 1, v3
    v_and_b32 v3, 1, v0
    v_lshl_add_u32 v2, v3, 2, v2
    v_lshlrev_b32 v2, 1, v2
    s_lshl_b32 s86, s3, 4
    """ % YB)
    for k in range(4): a("s_mov_b64 s[%d:%d], -1" % (16 + 2 * k, 17 + 2 * k))
    a("s_mov_b32 s92, 0")
    poll4("p2", lambda k: "v8, %s, s85 offen offset:%d %s" % (srd(WS), 1024 * k, ld), sleep2)
    stamp(8)
    sum4()
    for n in (2, 4, 8): a("v_add_f32_dpp v64, v64, v64 row_ror:%d %s" % (n, FULL))
    a("""
    v_cvt_pk_bf16_f32 v64, v64, v64
    s_mov_b32 exec_lo, 0x00030003
    s_mov_b32 exec_hi, 0x00030003
    buffer_store_short v64, v2, %s, s86 offen
    s_mov_b64 exec, -1
    """ % srd(OUT))
    a("L_fin:")
    if stamps:
        stamp(15)
        a("""
        s_lshl_b32 s7, s2, 3
        s_add_u32 s7, s7, s4
        s_lshl_b32 s7, s7, 6
        s_add_u32 s7, s7, %d
        s_add_u32 s40, s40, s7
        s_addc_u32 s41, s41, 0
        v_lshlrev_b32 v2, 2, v0
        s_mov_b64 exec, 0xffff
        global_store_dword v2, v31, s[40:41]
        """ % STAMP_OFF)
    a("L_end:\ns_endpgm")
    a("L_service:")
    NST = 7
    a("""
    s_lshl_b32 s7, s5, 5
    s_add_u32 s90, s38, s7
    s_addc_u32 s91, s39, 0
    s_mul_i32 s7, s3, %d
    s_add_u32 s7, s7, 3328
    s_add_u32 s94, s40, s7
    s_addc_u32 s95, s41, 0
    s_mov_b32 s93, 1
    """ % REC)
    def arrive():
        a("s_atomic_add s93, s[90:91], 0 glc")
    masks()
    a("""
    s_mov_b32 s85, 0x01000100
    s_mov_b32 s86, 0x03020302
    """)
    tail = 0 if clr_first else NST
    if clr_first:
        a("s_waitcnt vmcnt(32)")
        arrive()
    a("s_waitcnt vmcnt(%d)" % (27 + tail))
    def notify():
        a("""
        s_waitcnt lgkmcnt(0)
        s_cmp_lg_u32 s93, 31
        s_cbranch_scc1 L_nonote
        s_mul_i32 s7, s5, %d
        v_mul_u32_u24 v2, %d, v0
        v_mov_b32 v3, 1
        s_mov_b32 exec_hi, 0
        buffer_atomic_add v3, v2, %s, s7 offen offset:3328 %s
        s_mov_b64 exec, -1
        L_nonote:
        """ % (32 * REC, REC, srd(WS), st))
    for i in range(28):
        f = 48 + 4 * (i % 2)
        a("v_perm_b32 v30, v%d, v%d, s%d" % (8 + i // 2, 8 + i // 2, 85 + i % 2))
        for r in range(4): a("v_and_b32 v%d, v30, v%d" % (f + r, 4 + r))
        a("s_waitcnt vmcnt(%d)" % (27 - i + tail))
        a("v_mfma_f32_16x16x32_bf16 v[32:35], %s, %s, %s" % (v4(f), v4(64 + 4 * i), "0" if i == 0 else "v[32:35]"))
    if not clr_first:
        a("s_waitcnt vmcnt(0)")
        arrive()
    stamp(9)
    a("""
    s_mul_i32 s85, s3, %d
    v_and_b32 v2, 7, v0
    v_lshlrev_b32 v2, 5, v2
    v_and_b32 v3, 16, v0
    v_add_u32 v2, v2, v3
    """ % REC)
    for r in range(4): a("v_mov_b32 v%d, v%d" % (36 + r, 32 + r))
    for r in range(4): a("v_permlane32_swap_b32 v%d, v%d" % (32 + r, 36 + r))
    for r in range(4): a("v_add_f32_dpp v%d, v%d, v%d row_ror:8 %s" % (32 + r, 36 + r, 32 + r, FULL))
    a("""
    s_mov_b64 exec, 0x00ff00ff
    buffer_store_dwordx4 v[32:35], v2, %s, s85 offen offset:3072 %s
    s_mov_b64 exec, -1
    """ % (srd(WS), st))
    notify()
    stamp(10)
    a("""
    s_mov_b32 s92, 0
    s_cmp_eq_u32 s93, 31
    s_cbranch_scc1 L_gotn
    L_polln:
    s_mov_b32 s96, 0
    s_atomic_add s96, s[94:95], 0 glc
    s_waitcnt lgkmcnt(0)
    s_cmp_lg_u32 s96, -1
    s_cbranch_scc1 L_gotn
    s_sleep %d
    s_add_u32 s92, s92, 1
    s_cmp_lt_u32 s92, %d
    s_cbranch_scc1 L_polln
    L_gotn:
    """ % (sleepq, SPIN_MAX))
    stamp(11)
    a("""
    s_mul_i32 s85, s5, %d
    s_add_u32 s85, s85, 3072
    s_lshr_b32 s7, s6, 4
    s_mul_i32 s7, s7, %d
    s_add_u32 s86, s85, %d
    s_add_u32 s87, s85, %d
    s_add_u32 s85, s85, s7
    v_lshrrev_b32 v28, 4, v0
    v_mul_u32_u24 v28, %d, v28
    v_and_b32 v2, 15, v0
    v_lshl_add_u32 v28, v2, 4, v28
    v_lshlrev_b32 v2, 3, v0
    s_mov_b32 s92, 0
    L_pollq:
    """ % (32 * REC, 8 * REC, 16 * REC, 24 * REC, 2 * REC))
    for h in range(3):
        for rh in range(2):
            a("buffer_load_dwordx4 %s, v28, %s, s%d offen offset:%d %s" % (v4(64 + 8 * h + 4 * rh), srd(WS), 85 + h, REC * rh, ld))
    a("s_waitcnt vmcnt(0)")
    a("v_max3_u32 v8, v64, v65, v66\nv_max3_u32 v9, v67, v68, v69")
    for r in range(70, 86, 4): a("v_max3_u32 v8, v8, v%d, v%d\nv_max3_u32 v9, v9, v%d, v%d" % (r, r + 1, r + 2, r + 3))
    a("""
    v_max3_u32 v8, v8, v86, v87
    v_max_u32 v8, v8, v9
    v_cmp_eq_u32 vcc, -1, v8
    s_cbranch_vccz L_gotq
    s_add_u32 s92, s92, 1
    s_cmp_lt_u32 s92, %d
    s_cbranch_scc1 L_pollq
    L_gotq:
    """ % SPIN_MAX)
    for h in range(3):
        b = 64 + 8 * h
        for r in range(4): a("v_add_f32 v%d, v%d, v%d" % (b + r, b + r, b + 4 + r))
        a("v_cvt_pk_bf16_f32 v%d, v%d, v%d\nv_cvt_pk_bf16_f32 v%d, v%d, v%d" % (b, b, b + 1, b + 1, b + 2, b + 3))
        a("ds_write_b64 v2, v[%d:%d] offset:%d" % (b, b + 1, L_Q + 512 * h))
    a("s_waitcnt lgkmcnt(0)")
    stamp(12)
    a("s_setprio 0\ns_branch L_stream")
    txt, added = hazard.fix(a.text())
    return kernel_file(txt, 256, 512, LDS_BYTES, vgpr=256)

if __name__ == "__main__":
    open("k3.s", "w").write(gen())
    open("k3_st.s", "w").write(gen(stamps=True))
    open("k3_local.s", "w").write(gen(local=True))
    open("k3_local_st.s", "w").write(gen(stamps=True, local=True))
```

```python
import sys, argparse
from asmlib import *
import hazard

REC = 3584
ML = 256 * REC
YB = ML + 8 * 6144
WS_USED = YB + 112 * 4096
P1 = 0
L_Q = 0; L_OP = 2048; LDS_BYTES = L_OP + 8 * 3072
STAMP_OFF = 128 << 20
SPIN_MAX = 1 << 20

def gen(stamps=False, local=False, pol="nt", polw="nt", sleepq=4, sleepm=8, sleep1=0, sleep2=0, cl=4, prio=3, early=0, st="sc1", ld="sc1", clr_first=False, kprio=2, dbgst=False):
    a = Asm()
    def stamp(k):
        if stamps:
            a("s_memrealtime s[100:101]\ns_waitcnt lgkmcnt(0)\nv_writelane_b32 v31, s100, %d" % k)
    KB, VB, KA, VA, WS, WQ, XS, WO, OUT, DBG = [44 + 4 * i for i in range(10)]
    def srd(r): return "s[%d:%d]" % (r, r + 3)
    def v4(r): return "v[%d:%d]" % (r, r + 3)
    KS = lambda u: 64 + 16 * u
    VS = lambda u: (208 + 16 * u) if u < 3 else KS(u - 3)
    WOR = KS(6)
    FULL = "row_mask:0xf bank_mask:0xf"
    a("""
    s_cmp_ge_u32 s2, 256
    s_cbranch_scc1 L_end
    s_load_dwordx16 s[16:31], s[0:1], 0
    s_load_dwordx8 s[32:39], s[0:1], 64
    s_load_dwordx2 s[40:41], s[0:1], 96
    v_lshrrev_b32 v1, 6, v0
    v_and_b32 v0, 63, v0
    v_readfirstlane_b32 s4, v1
    """)
    if stamps: a("v_mov_b32 v31, 0")
    if local:
        a("s_and_b32 s3, s2, 7\ns_lshl_b32 s3, s3, 5\ns_lshr_b32 s7, s2, 3\ns_or_b32 s3, s3, s7")
    else:
        a("s_mov_b32 s3, s2")
    a("""
    s_lshr_b32 s5, s3, 5
    s_and_b32 s6, s3, 31
    s_mov_b32 s%d, %d
    s_mov_b32 s%d, 0x20000
    s_cmp_lg_u32 s4, 0
    s_cbranch_scc1 L_setup
    """ % (WS + 2, WS_USED, WS + 3))
    a("""
    s_setprio %d
    s_mov_b32 s%d, %d
    s_mov_b32 s%d, 0x20000
    s_mov_b32 s%d, 896
    s_mov_b32 s%d, 0x20000
    s_and_b32 s85, s6, 1
    s_mul_i32 s86, s85, 448
    s_mul_i32 s85, s85, %d
    s_bfe_u32 s7, s6, 0x30001
    s_lshl_b32 s7, s7, 7
    s_add_u32 s85, s85, s7
    s_lshl_b32 s7, s5, 10
    s_add_u32 s85, s85, s7
    v_lshrrev_b32 v2, 3, v0
    v_mul_u32_u24 v3, 56, v2
    v_mul_u32_u24 v2, %d, v2
    v_and_b32 v8, 7, v0
    v_lshl_add_u32 v2, v8, 4, v2
    s_mul_i32 s87, s3, %d
    s_mul_i32 s88, s3, 1792
    s_add_u32 s88, s88, %d
    s_mul_i32 s89, s5, 6144
    s_lshl_b32 s7, s6, 6
    s_add_u32 s89, s89, s7
    s_add_u32 s89, s89, %d
    v_mov_b32 v24, -1
    v_mov_b32 v25, -1
    v_mov_b32 v26, -1
    v_mov_b32 v27, -1
    v_lshlrev_b32 v28, 4, v0
    v_lshrrev_b32 v29, 2, v0
    v_lshlrev_b32 v29, 11, v29
    v_and_b32 v8, 3, v0
    v_lshl_add_u32 v29, v8, 4, v29
    s_cmp_ge_u32 s6, 16
    s_waitcnt lgkmcnt(0)
    s_cselect_b32 s%d, s22, s32
    s_cselect_b32 s%d, s23, s33
    s_cselect_b32 s%d, s16, s26
    s_cselect_b32 s%d, s17, s27
    """ % (prio, WQ + 2, 448 * 8192, WQ + 3, XS + 2, XS + 3, 224 * 8192, 28 * 8192, REC, YB, ML, WQ, WQ + 1, XS, XS + 1))
    def clears():
        a("""
        s_mov_b32 s%d, s40
        s_mov_b32 s%d, s41
        buffer_store_dwordx4 v[24:27], v28, %s, s87 offen ST
        buffer_store_dwordx4 v[24:27], v28, %s, s87 offen offset:1024 ST
        buffer_store_dwordx4 v[24:27], v28, %s, s87 offen offset:2048 ST
        buffer_store_dwordx4 v[24:27], v28, %s, s88 offen ST
        s_mov_b32 exec_hi, 0xffff
        buffer_store_dwordx4 v[24:27], v28, %s, s88 offen offset:1024 ST
        s_mov_b64 exec, 0x1ffff
        buffer_store_dwordx4 v[24:27], v28, %s, s87 offen offset:3072 ST
        s_mov_b64 exec, 0xfff
        buffer_store_dwordx4 v[24:27], v29, %s, s89 offen ST
        s_mov_b64 exec, -1
        """.replace("ST", st) % ((WS, WS + 1) + (srd(WS),) * 7))
    if clr_first: clears()
    for i in range(28):
        a("buffer_load_dwordx4 %s, v2, %s, s85 offen %s" % (v4(64 + 4 * i), srd(WQ), polw))
        if i < 27: a("s_add_u32 s85, s85, 8192")
        if i == 0:
            a("""
            buffer_load_dwordx4 v[8:11], v3, %s, s86 offen
            buffer_load_dwordx4 v[12:15], v3, %s, s86 offen offset:16
            buffer_load_dwordx4 v[16:19], v3, %s, s86 offen offset:32
            buffer_load_dwordx2 v[20:21], v3, %s, s86 offen offset:48
            """ % ((srd(XS),) * 4))
    if not clr_first: clears()
    a("L_setup:")
    a("""
    v_lshrrev_b32 v1, 4, v0
    v_lshlrev_b32 v1, 9, v1
    v_and_b32 v30, 15, v0
    v_lshl_add_u32 v1, v30, 4, v1
    s_lshr_b32 s7, s4, 2
    s_lshl_b32 s8, s7, 8
    s_lshl_b32 s42, s7, 7
    s_and_b32 s7, s4, 3
    s_add_u32 s8, s8, s7
    s_add_u32 s42, s42, s7
    s_and_b32 s7, s3, 7
    s_lshl_b32 s7, s7, 2
    s_add_u32 s8, s8, s7
    s_lshr_b32 s43, s3, 3
    s_lshl_b32 s7, s43, 4
    s_add_u32 s8, s8, s7
    s_lshl_b32 s8, s8, 12
    s_lshl_b32 s7, s6, 2
    s_add_u32 s42, s42, s7
    s_lshl_b32 s7, s5, 5
    s_add_u32 s42, s42, s7
    s_lshl_b32 s42, s42, 12
    s_and_b32 s42, s42, 0xfffff
    """)
    for s in range(7, 0, -1):
        a("s_add_u32 s%d, s8, %d\ns_and_b32 s%d, s%d, 0x1fffff" % (8 + s, s * 32 * 4096, 8 + s, 8 + s))
    a("s_and_b32 s8, s8, 0x1fffff")
    a("""
    s_lshl_b32 s43, s43, 21
    s_lshl_b32 s7, s5, 22
    s_add_u32 s7, s7, %d
    s_mov_b32 s%d, 0x100000
    s_mov_b32 s%d, 0x20000
    s_mov_b32 s%d, 0x100000
    s_mov_b32 s%d, 0x20000
    s_mov_b32 s%d, 0x200000
    s_mov_b32 s%d, 0x20000
    s_mov_b32 s%d, 0x200000
    s_mov_b32 s%d, 0x20000
    s_waitcnt lgkmcnt(0)
    s_add_u32 s%d, s18, s7
    s_addc_u32 s%d, s19, 0
    s_add_u32 s%d, s28, s43
    s_addc_u32 s%d, s29, 0
    s_add_u32 s%d, s20, s7
    s_addc_u32 s%d, s21, 0
    s_add_u32 s%d, s30, s43
    s_addc_u32 s%d, s31, 0
    s_mov_b32 s%d, s40
    s_mov_b32 s%d, s41
    """ % (6144 * 512, KA + 2, KA + 3, VA + 2, VA + 3, KB + 2, KB + 3, VB + 2, VB + 3,
           KA, KA + 1, KB, KB + 1, VA, VA + 1, VB, VB + 1, WS, WS + 1))
    stamp(0)
    a("s_barrier")
    a("s_cmp_eq_u32 s4, 0\ns_cbranch_scc1 L_service")
    a("L_stream:")
    cnt = [0]
    def ld_unit(r, sr, so):
        for n, o in enumerate((0, 256, 2048, 2304)):
            a("buffer_load_dwordx4 %s, v1, %s, %s offen offset:%d %s" % (v4(r + 4 * n), srd(sr), so, o, pol))
            cnt[0] += 1
            if cl and cnt[0] % cl == 0: a("s_nop 0")
    def ldK(u): ld_unit(KS(u), KA if u == 0 else KB, "s42" if u == 0 else "s%d" % (7 + u))
    def ldV(u): ld_unit(VS(u), VA if u == 0 else VB, "s42" if u == 0 else "s%d" % (7 + u))
    for u in range(9): ldK(u)
    for u in range(3): ldV(u)
    def masks():
        a("""
        v_and_b32 v2, 1, v0
        v_lshlrev_b32 v2, 4, v2
        v_mov_b32 v3, 0xffff
        v_lshlrev_b32 v2, v2, v3
        v_bfe_u32 v3, v0, 1, 2
        """)
        for r in range(4):
            a("v_cmp_eq_u32 vcc, %d, v3\nv_cndmask_b32 v%d, 0, v2, vcc" % (r, 4 + r))
    masks()
    a("""
    s_cmp_ge_u32 s6, 16
    s_cselect_b32 s%d, s24, s34
    s_cselect_b32 s%d, s25, s35
    s_mov_b32 s%d, %d
    s_mov_b32 s%d, 0x20000
    s_mov_b32 s%d, s36
    s_mov_b32 s%d, s37
    s_mov_b32 s%d, 1792
    s_mov_b32 s%d, 0x20000
    s_mov_b32 s84, 0x3db8aa3b
    v_and_b32 v2, 15, v0
    v_lshlrev_b32 v2, 4, v2
    """ % (WO, WO + 1, WO + 2, 4096 * 896, WO + 3, OUT, OUT + 1, OUT + 2, OUT + 3))
    stamp(1)
    a("s_barrier")
    stamp(2)
    a("s_setprio %d" % kprio)
    for h in range(3):
        a("ds_read_b128 %s, v2 offset:%d" % (v4(32 + 8 * h), L_Q + 512 * h))
        a("ds_read_b128 %s, v2 offset:%d" % (v4(36 + 8 * h), L_Q + 512 * h + 256))
    a("s_waitcnt lgkmcnt(0)")
    def red3(rs):
        for m in ("row_half_mirror", "quad_perm:[2,3,0,1]", "quad_perm:[1,0,3,2]"):
            for r in rs:
                a("v_add_f32_dpp v%d, v%d, v%d %s %s" % (r, r, r, m, FULL))
    issuedV = 0
    for u in range(9):
        a("s_waitcnt vmcnt(%d)" % ((8 - u) * 4 + 12 + 4 * issuedV))
        k = KS(u)
        if u == 0:
            ch = [(56, k, 40), (57, k, 48), (58, k + 8, 40), (59, k + 8, 48)]
        else:
            t = 56 + 2 * (u % 2)
            ch = [(t, k, 32), (t + 1, k + 8, 32)]
        for c, _, _ in ch: a("v_mov_b32 v%d, 0" % c)
        for e in range(8):
            for c, kk, q in ch:
                a("v_dot2c_f32_bf16 v%d, v%d, v%d" % (c, kk + e, q + e))
        if u < early:
            ldV(u + 3); issuedV += 1
        s0 = 8 + 2 * u
        if u == 0:
            for bm, o in ((0x3, 0), (0xc, 1)):
                for g in range(2):
                    a("v_add_f32_dpp v%d, v%d, v%d row_ror:8 row_mask:0xf bank_mask:0x%x" % (s0 + g, 56 + 2 * g + o, 56 + 2 * g + o, bm))
        else:
            for g in range(2):
                a("v_add_f32_dpp v%d, v%d, v%d row_ror:8 %s" % (s0 + g, ch[g][0], ch[g][0], FULL))
        red3([s0, s0 + 1])
        a("v_cvt_pk_bf16_f32 v%d, v%d, v%d" % (s0 + 1, s0, s0 + 1))
        a("v_lshlrev_b32 v%d, 16, v%d" % (s0, s0 + 1))
        a("v_and_b32 v%d, 0xffff0000, v%d" % (s0 + 1, s0 + 1))
    a("v_max_f32 v26, v8, v9")
    a("v_max3_f32 v28, v10, v11, v12")
    for r in range(13, 25, 2): a("v_max3_f32 v28, v28, v%d, v%d" % (r, r + 1))
    a("v_max_f32 v28, v28, v25")
    for sw in ("v_permlane16_swap_b32", "v_permlane32_swap_b32"):
        a("v_mov_b32 v56, v26\nv_mov_b32 v57, v28\n%s v26, v56\n%s v28, v57\nv_max_f32 v26, v26, v56\nv_max_f32 v28, v28, v57" % (sw, sw))
    a("v_mul_f32 v26, s84, v26\nv_mul_f32 v28, s84, v28")
    for r in range(8, 26):
        a("v_fma_f32 v%d, v%d, s84, -v%d" % (r, r, 26 if r < 10 else 28))
    for r in range(8, 26):
        a("v_exp_f32 v%d, v%d" % (r, r))
    a("v_add_f32 v27, v8, v9")
    a("v_add_f32 v29, v10, v11\nv_add_f32 v30, v12, v13")
    for r in range(14, 26, 2): a("v_add_f32 v29, v29, v%d\nv_add_f32 v30, v30, v%d" % (r, r + 1))
    a("v_add_f32 v29, v29, v30")
    for sw in ("v_permlane16_swap_b32", "v_permlane32_swap_b32"):
        a("v_mov_b32 v56, v27\nv_mov_b32 v57, v29\n%s v27, v56\n%s v29, v57\nv_add_f32 v27, v27, v56\nv_add_f32 v29, v29, v57" % (sw, sw))
    a("""
    s_mul_i32 s85, s5, 6144
    s_lshl_b32 s7, s6, 6
    s_add_u32 s85, s85, s7
    s_lshl_b32 s7, s4, 3
    s_add_u32 s85, s85, s7
    s_add_u32 s85, s85, %d
    v_cmp_eq_u32 vcc, 16, v0
    v_lshlrev_b32 v2, 8, v0
    v_add_u32 v2, 2048, v2
    v_cndmask_b32 v56, v26, v28, vcc
    v_cndmask_b32 v57, v27, v29, vcc
    v_cndmask_b32 v2, v2, 0, vcc
    s_mov_b64 exec, 0x10101
    buffer_store_dwordx2 v[56:57], v2, %s, s85 offen %s
    s_mov_b64 exec, -1
    """ % (ML, srd(WS), st))
    a.l = [x.replace("v_cndmask_b32 v2, v2, 0, vcc", "v_cndmask_b32_e64 v2, v2, 0, vcc") for x in a.l]
    a("s_setprio 0")
    stamp(13)
    for u in range(early, 6): ldV(u + 3)
    a("""
    s_bfe_u32 s85, s6, 0x10003
    s_lshl_b32 s7, s5, 1
    s_add_u32 s85, s85, s7
    s_lshl_b32 s85, s85, 3
    s_and_b32 s7, s6, 7
    s_add_u32 s85, s85, s7
    s_mul_i32 s85, s85, %d
    s_and_b32 s7, s4, 3
    s_lshl_b32 s7, s7, 8
    s_add_u32 s85, s85, s7
    s_add_u32 s86, s85, %d
    s_cmp_ge_u32 s4, 4
    s_cselect_b32 s%d, s%d, 0
    s_mov_b32 s%d, s%d
    s_mov_b32 s%d, s%d
    s_mov_b32 s%d, 0x20000
    s_cmp_eq_u32 s4, 7
    s_cselect_b32 s%d, 0, s%d
    v_bfe_u32 v2, v0, 4, 1
    v_bfe_u32 v3, v0, 5, 1
    v_lshl_add_u32 v2, v2, 1, v3
    v_bfe_u32 v3, v0, 3, 1
    v_lshl_add_u32 v2, v3, 4, v2
    v_mul_u32_u24 v2, 896, v2
    v_and_b32 v3, 7, v0
    v_lshl_add_u32 v2, v3, 4, v2
    """ % (32 * 896, 8 * 896, WO + 2, WO + 2, WQ, WO, WQ + 1, WO + 1, WQ + 3, WQ + 2, WO + 2))
    for s in range(4):
        for b in range(2):
            a("buffer_load_dwordx4 %s, v2, %s, s%d offen offset:%d %s" % (v4(WOR + 8 * s + 4 * b), srd(WQ if b else WO), 85 + s // 2, (s % 2) * 3584 + b * 128, polw))
    stamp(3)
    for r in range(8, 26):
        a("v_cvt_pk_bf16_f32 v%d, v%d, v%d" % (r, r, r))
    a("""
    s_mul_i32 s7, s4, 3072
    v_and_b32 v2, 15, v0
    v_lshlrev_b32 v2, 5, v2
    v_bfe_u32 v3, v0, 4, 1
    v_lshl_add_u32 v2, v3, 4, v2
    v_add_u32 v2, s7, v2
    v_bfe_u32 v3, v0, 5, 1
    v_lshl_add_u32 v3, v3, 10, v2
    """)
    for u in range(9):
        for g in range(2):
            f = 48 + 4 * g
            for r in range(4): a("v_and_b32 v%d, v%d, v%d" % (f + r, 8 + 2 * u + g, 4 + r))
        a("s_waitcnt vmcnt(%d)" % ((8 - u) * 4 + 8 + (1 if u < 3 + early else 0)))
        acc = 40 if u == 0 else 32
        for g in range(2):
            for d in range(2):
                first = (u in (0, 1)) and g == 0
                a("v_mfma_f32_16x16x32_bf16 %s, %s, %s, %s" % (v4(acc + 4 * d), v4(48 + 4 * g), v4(VS(u) + 8 * g + 4 * d), "0" if first else v4(acc + 4 * d)))
        if u == 2:
            a("ds_write_b128 v3, v[40:43] offset:%d\nds_write_b128 v3, v[44:47] offset:%d" % (L_OP + 1024, L_OP + 1024 + 512))
    a("s_cmp_ge_u32 s4, 3")
    a("ds_write_b128 v2, v[32:35] offset:%d\nds_write_b128 v2, v[36:39] offset:%d" % (L_OP, L_OP + 512))
    stamp(4)
    a("s_cbranch_scc1 L_late")
    a("""
    s_mul_i32 s85, s5, 6144
    s_add_u32 s85, s85, %d
    s_lshr_b32 s7, s6, 4
    s_lshl_b32 s7, s7, 10
    s_lshl_b32 s86, s4, 11
    s_cmp_eq_u32 s4, 0
    s_cselect_b32 s7, s7, s86
    s_cselect_b32 s87, 10, 11
    s_cselect_b32 s88, 0.5, 1.0
    s_bfm_b32 s87, s87, 0
    s_add_u32 s85, s85, s7
    s_lshl_b32 s7, s6, 6
    v_lshlrev_b32 v2, 4, v0
    v_add_u32 v8, s7, v2
    v_add_u32 v9, 1024, v8
    v_and_b32 v8, s87, v8
    v_and_b32 v9, s87, v9
    s_mov_b32 s92, 0
    L_pollm:
    buffer_load_dwordx4 v[64:67], v8, %s, s85 offen %s
    buffer_load_dwordx4 v[68:71], v9, %s, s85 offen %s
    s_waitcnt vmcnt(0)
    v_max3_u32 v10, v64, v65, v66
    v_max3_u32 v11, v67, v68, v69
    v_max3_u32 v10, v10, v70, v71
    v_max_u32 v10, v10, v11
    v_cmp_eq_u32 vcc, -1, v10
    s_cbranch_vccz L_gotm
    s_sleep %d
    s_add_u32 s92, s92, 1
    s_cmp_lt_u32 s92, %d
    s_cbranch_scc1 L_pollm
    L_gotm:
    v_max3_f32 v10, v64, v66, v68
    v_max_f32 v10, v10, v70
    """ % (ML, srd(WS), ld, srd(WS), ld, sleepm, SPIN_MAX))
    def allred(op, r, t):
        for m in ("quad_perm:[1,0,3,2]", "quad_perm:[2,3,0,1]", "row_half_mirror", "row_ror:8"):
            a("%s_dpp v%d, v%d, v%d %s %s" % (op, r, r, r, m, FULL))
        for sw in ("v_permlane16_swap_b32", "v_permlane32_swap_b32"):
            a("v_mov_b32 v%d, v%d\n%s v%d, v%d\n%s v%d, v%d, v%d" % (t, r, sw, r, t, op, r, r, t))
    allred("v_max_f32", 10, 11)
    for k in range(4): a("v_sub_f32 v%d, v%d, v10" % (64 + 2 * k, 64 + 2 * k))
    for k in range(4): a("v_exp_f32 v%d, v%d" % (64 + 2 * k, 64 + 2 * k))
    a("v_mul_f32 v10, v64, v65")
    for k in range(1, 4): a("v_fmac_f32 v10, v%d, v%d" % (64 + 2 * k, 65 + 2 * k))
    allred("v_add_f32", 10, 11)
    a("""
    v_mul_f32 v10, s88, v10
    v_rcp_f32 v10, v10
    v_mul_f32 v64, v64, v10
    v_mul_f32 v66, v66, v10
    s_lshl_b32 s7, s4, 10
    v_add_u32 v8, s7, v2
    s_mul_i32 s85, s3, %d
    """ % REC)
    for w in range(8): a("v_readlane_b32 s%d, v%d, %d" % (16 + w, 64 + 2 * (w % 2), w // 2))
    stamp(14)
    a("s_waitcnt lgkmcnt(0)\ns_barrier")
    stamp(5)
    for w in range(8): a("ds_read_b128 %s, v8 offset:%d" % (v4(80 + 4 * w), L_OP + 3072 * w))
    for w in range(8):
        a("s_waitcnt lgkmcnt(%d)" % (7 - w))
        for r in range(4):
            if w == 0: a("v_mul_f32 v%d, s16, v%d" % (12 + r, 80 + r))
            else: a("v_fmac_f32 v%d, s%d, v%d" % (12 + r, 16 + w, 80 + 4 * w + r))
    a("""
    buffer_store_dwordx4 v[12:15], v8, %s, s85 offen %s
    s_branch L_fin
    """ % (srd(WS), st))
    a("L_late:")
    a("""
    s_cmp_lg_u32 s4, 3
    s_cbranch_scc1 L_late2
    s_mov_b32 s%d, s38
    s_mov_b32 s%d, s39
    s_mov_b32 s%d, 256
    s_mov_b32 s%d, 0x20000
    v_and_b32 v8, 7, v0
    v_lshlrev_b32 v8, 5, v8
    s_mov_b32 s92, 0
    L_pollc:
    buffer_load_dword v9, v8, %s, 0 offen %s
    s_waitcnt vmcnt(0)
    v_subrev_u32 v9, 1, v9
    v_and_b32 v9, 0x8000001f, v9
    v_cmp_ne_u32 vcc, 31, v9
    s_cbranch_vccz L_late2
    s_sleep 8
    s_add_u32 s92, s92, 1
    s_cmp_lt_u32 s92, %d
    s_cbranch_scc1 L_pollc
    L_late2:
    """ % (DBG, DBG + 1, DBG + 2, DBG + 3, srd(DBG), ld, SPIN_MAX))
    a("s_waitcnt lgkmcnt(0)\ns_barrier")
    stamp(5)
    a("s_cmp_eq_u32 s4, 3\ns_cbranch_scc1 L_fin")
    a("""
    s_lshr_b32 s7, s6, 3
    s_cmp_ge_u32 s6, 16
    s_cselect_b64 s[20:21], -1, 0
    s_cselect_b64 s[22:23], -1, 0
    s_cselect_b32 s88, 0, s7
    s_cselect_b32 s89, s7, 1
    s_sub_u32 s89, s89, 1
    s_lshl_b32 s88, s88, 4
    s_lshl_b32 s7, s5, 5
    s_add_u32 s88, s88, s7
    s_mul_i32 s90, s88, RECC
    s_lshl_b32 s7, s89, 10
    s_add_u32 s90, s90, s7
    s_and_b32 s7, s6, 7
    s_lshl_b32 s7, s7, 7
    s_add_u32 s90, s90, s7
    s_add_u32 s90, s90, %d
    s_add_u32 s91, s90, %d
    s_add_u32 s93, s90, %d
    s_add_u32 s94, s90, %d
    v_lshrrev_b32 v2, 3, v0
    v_and_b32 v3, 7, v0
    v_lshlrev_b32 v3, 4, v3
    v_mul_u32_u24 v8, RECC, v2
    v_add_u32 v8, v8, v3
    s_mov_b64 s[16:17], -1
    s_mov_b64 s[18:19], -1
    s_mov_b32 s92, 0
    """.replace("RECC", str(REC)) % (P1, 8 * REC, 16 * REC, 24 * REC))
    for r in range(72, 80): a("v_mov_b32 v%d, 0" % r)
    def poll4(name, addr, sleep):
        a("L_%s:" % name)
        for k in range(4):
            a("s_mov_b64 exec, s[%d:%d]" % (16 + 2 * k, 17 + 2 * k))
            a("s_cbranch_execz L_%ss%d" % (name, k))
            a("buffer_load_dwordx4 %s, %s" % (v4(64 + 4 * k), addr(k)))
            a("L_%ss%d:" % (name, k))
        a("s_mov_b64 exec, -1\ns_waitcnt vmcnt(0)")
        for k in range(4):
            a("v_max3_u32 v%d, v%d, v%d, v%d" % (16 + k, 64 + 4 * k, 65 + 4 * k, 66 + 4 * k))
        for k in range(4):
            a("v_max_u32 v%d, v%d, v%d" % (16 + k, 16 + k, 67 + 4 * k))
        for k in range(4):
            a("v_cmp_eq_u32 s[%d:%d], -1, v%d" % (16 + 2 * k, 17 + 2 * k, 16 + k))
        a("""
        s_or_b64 s[24:25], s[16:17], s[18:19]
        s_or_b64 s[26:27], s[20:21], s[22:23]
        s_or_b64 s[24:25], s[24:25], s[26:27]
        s_cbranch_scc0 L_%sg
        """ % name)
        if sleep: a("s_sleep %d" % sleep)
        a("""
        s_add_u32 s92, s92, 1
        s_cmp_lt_u32 s92, %d
        s_cbranch_scc1 L_%s
        L_%sg:
        """ % (SPIN_MAX, name, name))
    a("""
    s_cmp_ge_u32 s6, 16
    s_cselect_b32 s85, 0, 56
    s_and_b32 s7, s4, 3
    s_lshl_b32 s7, s7, 4
    s_add_u32 s85, s85, s7
    s_lshl_b32 s85, s85, 12
    s_lshl_b32 s7, s5, 4
    s_and_b32 s86, s6, 15
    s_add_u32 s7, s7, s86
    s_lshl_b32 s7, s7, 5
    s_add_u32 s85, s85, s7
    s_add_u32 s85, s85, %d
    s_cmp_eq_u32 s4, 7
    s_cselect_b32 s87, 0, 0x00ff00ff
    v_lshrrev_b32 v2, 5, v0
    v_and_b32 v3, 7, v0
    v_lshl_add_u32 v2, v2, 3, v3
    v_lshlrev_b32 v2, 12, v2
    v_bfe_u32 v3, v0, 4, 1
    v_lshl_add_u32 v2, v3, 4, v2
    """ % YB)
    poll4("p1", lambda k: "v8, %s, s%d offen %s" % (srd(WS), (90, 91, 93, 94)[k], ld), sleep1)
    stamp(6)
    def sum4():
        for r in range(4): a("v_add_f32 v%d, v%d, v%d\nv_add_f32 v%d, v%d, v%d" % (64 + r, 64 + r, 68 + r, 72 + r, 72 + r, 76 + r))
        for r in range(4): a("v_add_f32 v%d, v%d, v%d" % (64 + r, 64 + r, 72 + r))
        a("""
        v_permlane32_swap_b32 v64, v65
        v_permlane32_swap_b32 v66, v67
        v_add_f32 v64, v64, v65
        v_add_f32 v66, v66, v67
        v_permlane16_swap_b32 v64, v66
        v_add_f32 v64, v64, v66
        """)
    sum4()
    a("v_add_f32_dpp v64, v64, v64 row_ror:8 %s" % FULL)
    a("v_cvt_pk_bf16_f32 v20, v64, v64")
    for bm, o in ((0x3, 0), (0xc, 4)):
        for s in range(4):
            a("v_mov_b32_dpp v%d, v20 row_newbcast:%d row_mask:0xf bank_mask:0x%x" % (24 + s, s + o, bm))
    for s in range(4):
        for r in range(4): a("v_and_b32 v%d, v%d, v%d" % (88 + 4 * s + r, 24 + s, 4 + r))
        if s >= 1:
            for b in range(2):
                a("v_mfma_f32_16x16x32_bf16 %s, %s, %s, %s" % (v4(32 + 4 * b), v4(88 + 4 * (s - 1)), v4(WOR + 8 * (s - 1) + 4 * b), "0" if s == 1 else v4(32 + 4 * b)))
    for b in range(2):
        a("v_mfma_f32_16x16x32_bf16 %s, %s, %s, %s" % (v4(32 + 4 * b), v4(100), v4(WOR + 24 + 4 * b), v4(32 + 4 * b)))
    for r in range(4): a("v_permlane32_swap_b32 v%d, v%d" % (32 + r, 36 + r))
    for r in range(4): a("v_add_f32_dpp v%d, v%d, v%d row_ror:8 %s" % (32 + r, 36 + r, 32 + r, FULL))
    a("""
    s_mov_b32 exec_lo, 0x00ff00ff
    s_mov_b32 exec_hi, s87
    buffer_store_dwordx4 v[32:35], v2, %s, s85 offen %s
    s_mov_b64 exec, -1
    """ % (srd(WS), st))
    stamp(7)
    a("""
    s_cmp_lg_u32 s4, 4
    s_cbranch_scc1 L_fin
    s_cmp_ge_u32 s3, 112
    s_cbranch_scc1 L_fin
    s_lshl_b32 s85, s3, 12
    s_add_u32 s85, s85, %d
    v_lshlrev_b32 v8, 4, v0
    v_bfe_u32 v2, v0, 4, 1
    v_bfe_u32 v3, v0, 5, 1
    v_lshl_add_u32 v2, v2, 1, v3
    v_and_b32 v3, 1, v0
    v_lshl_add_u32 v2, v3, 2, v2
    v_lshlrev_b32 v2, 1, v2
    s_lshl_b32 s86, s3, 4
    """ % YB)
    for k in range(4): a("s_mov_b64 s[%d:%d], -1" % (16 + 2 * k, 17 + 2 * k))
    a("s_mov_b32 s92, 0")
    poll4("p2", lambda k: "v8, %s, s85 offen offset:%d %s" % (srd(WS), 1024 * k, ld), sleep2)
    stamp(8)
    sum4()
    for n in (2, 4, 8): a("v_add_f32_dpp v64, v64, v64 row_ror:%d %s" % (n, FULL))
    a("""
    v_cvt_pk_bf16_f32 v64, v64, v64
    s_mov_b32 exec_lo, 0x00030003
    s_mov_b32 exec_hi, 0x00030003
    buffer_store_short v64, v2, %s, s86 offen
    s_mov_b64 exec, -1
    """ % srd(OUT))
    a("L_fin:")
    if stamps and dbgst:
        stamp(15)
        a("""
        v_readlane_b32 s7, v31, 0
        s_not_b32 s7, s7
        s_nop 3
        v_writelane_b32 v31, s7, 3
        v_readlane_b32 s7, v31, 0
        s_nop 3
        v_writelane_b32 v31, s7, 1
        v_readlane_b32 s7, v31, 8
        s_nop 3
        v_writelane_b32 v31, s7, 14
        v_lshlrev_b32 v2, 2, v0
        s_mov_b64 exec, 0xfefe
        global_atomic_umax v2, v31, s[38:39] sc1
        """)
    elif stamps:
        stamp(15)
        a("""
        s_lshl_b32 s7, s2, 3
        s_add_u32 s7, s7, s4
        s_lshl_b32 s7, s7, 6
        s_add_u32 s7, s7, %d
        s_add_u32 s40, s40, s7
        s_addc_u32 s41, s41, 0
        v_lshlrev_b32 v2, 2, v0
        s_mov_b64 exec, 0xffff
        global_store_dword v2, v31, s[40:41]
        """ % STAMP_OFF)
    a("L_end:\ns_endpgm")
    a("L_service:")
    NST = 7
    a("""
    s_lshl_b32 s7, s5, 5
    s_add_u32 s90, s38, s7
    s_addc_u32 s91, s39, 0
    s_mul_i32 s7, s3, %d
    s_add_u32 s7, s7, 3328
    s_add_u32 s94, s40, s7
    s_addc_u32 s95, s41, 0
    s_mov_b32 s93, 1
    """ % REC)
    def arrive():
        a("s_atomic_add s93, s[90:91], 0 glc")
    masks()
    a("""
    s_mov_b32 s85, 0x01000100
    s_mov_b32 s86, 0x03020302
    """)
    tail = 0 if clr_first else NST
    if clr_first:
        a("s_waitcnt vmcnt(32)")
        arrive()
    a("s_waitcnt vmcnt(%d)" % (27 + tail))
    def notify():
        a("""
        s_waitcnt lgkmcnt(0)
        s_and_b32 s93, s93, 31
        s_cmp_lg_u32 s93, 31
        s_cbranch_scc1 L_nonote
        s_mul_i32 s7, s5, %d
        v_mul_u32_u24 v2, %d, v0
        v_mov_b32 v3, 1
        s_mov_b32 exec_hi, 0
        buffer_atomic_add v3, v2, %s, s7 offen offset:3328 %s
        s_mov_b64 exec, -1
        L_nonote:
        """ % (32 * REC, REC, srd(WS), st))
    for i in range(28):
        f = 48 + 4 * (i % 2)
        a("v_perm_b32 v30, v%d, v%d, s%d" % (8 + i // 2, 8 + i // 2, 85 + i % 2))
        for r in range(4): a("v_and_b32 v%d, v30, v%d" % (f + r, 4 + r))
        a("s_waitcnt vmcnt(%d)" % (27 - i + tail))
        a("v_mfma_f32_16x16x32_bf16 v[32:35], %s, %s, %s" % (v4(f), v4(64 + 4 * i), "0" if i == 0 else "v[32:35]"))
    if not clr_first:
        a("s_waitcnt vmcnt(0)")
        arrive()
    stamp(9)
    a("""
    s_mul_i32 s85, s3, %d
    v_and_b32 v2, 7, v0
    v_lshlrev_b32 v2, 5, v2
    v_and_b32 v3, 16, v0
    v_add_u32 v2, v2, v3
    """ % REC)
    for r in range(4): a("v_mov_b32 v%d, v%d" % (36 + r, 32 + r))
    for r in range(4): a("v_permlane32_swap_b32 v%d, v%d" % (32 + r, 36 + r))
    for r in range(4): a("v_add_f32_dpp v%d, v%d, v%d row_ror:8 %s" % (32 + r, 36 + r, 32 + r, FULL))
    a("""
    s_mov_b64 exec, 0x00ff00ff
    buffer_store_dwordx4 v[32:35], v2, %s, s85 offen offset:3072 %s
    s_mov_b64 exec, -1
    """ % (srd(WS), st))
    notify()
    stamp(10)
    a("""
    s_mov_b32 s92, 0
    s_cmp_eq_u32 s93, 31
    s_cbranch_scc1 L_gotn
    L_polln:
    s_mov_b32 s96, 0
    s_atomic_add s96, s[94:95], 0 glc
    s_waitcnt lgkmcnt(0)
    s_cmp_lg_u32 s96, -1
    s_cbranch_scc1 L_gotn
    s_sleep %d
    s_add_u32 s92, s92, 1
    s_cmp_lt_u32 s92, %d
    s_cbranch_scc1 L_polln
    L_gotn:
    """ % (sleepq, SPIN_MAX))
    stamp(11)
    a("""
    s_mul_i32 s85, s5, %d
    s_add_u32 s85, s85, 3072
    s_lshr_b32 s7, s6, 4
    s_mul_i32 s7, s7, %d
    s_add_u32 s86, s85, %d
    s_add_u32 s87, s85, %d
    s_add_u32 s85, s85, s7
    v_lshrrev_b32 v28, 4, v0
    v_mul_u32_u24 v28, %d, v28
    v_and_b32 v2, 15, v0
    v_lshl_add_u32 v28, v2, 4, v28
    v_lshlrev_b32 v2, 3, v0
    s_mov_b32 s92, 0
    L_pollq:
    """ % (32 * REC, 8 * REC, 16 * REC, 24 * REC, 2 * REC))
    for h in range(3):
        for rh in range(2):
            a("buffer_load_dwordx4 %s, v28, %s, s%d offen offset:%d %s" % (v4(64 + 8 * h + 4 * rh), srd(WS), 85 + h, REC * rh, ld))
    a("s_waitcnt vmcnt(0)")
    a("v_max3_u32 v8, v64, v65, v66\nv_max3_u32 v9, v67, v68, v69")
    for r in range(70, 86, 4): a("v_max3_u32 v8, v8, v%d, v%d\nv_max3_u32 v9, v9, v%d, v%d" % (r, r + 1, r + 2, r + 3))
    a("""
    v_max3_u32 v8, v8, v86, v87
    v_max_u32 v8, v8, v9
    v_cmp_eq_u32 vcc, -1, v8
    s_cbranch_vccz L_gotq
    s_add_u32 s92, s92, 1
    s_cmp_lt_u32 s92, %d
    s_cbranch_scc1 L_pollq
    L_gotq:
    """ % SPIN_MAX)
    for h in range(3):
        b = 64 + 8 * h
        for r in range(4): a("v_add_f32 v%d, v%d, v%d" % (b + r, b + r, b + 4 + r))
        a("v_cvt_pk_bf16_f32 v%d, v%d, v%d\nv_cvt_pk_bf16_f32 v%d, v%d, v%d" % (b, b, b + 1, b + 1, b + 2, b + 3))
        a("ds_write_b64 v2, v[%d:%d] offset:%d" % (b, b + 1, L_Q + 512 * h))
    a("s_waitcnt lgkmcnt(0)")
    stamp(12)
    a("s_setprio 0\ns_branch L_stream")
    txt, added = hazard.fix(a.text())
    return kernel_file(txt, 256, 512, LDS_BYTES, vgpr=256)

if __name__ == "__main__":
    open("k3.s", "w").write(gen())
    open("k3_st.s", "w").write(gen(stamps=True))
    open("k3_local.s", "w").write(gen(local=True))
    open("k3_local_st.s", "w").write(gen(stamps=True, local=True))
    open("k3_dbg.s", "w").write(gen(stamps=True, dbgst=True))
```
